```python
import torch

def _softmax(x, axis=-1):
    return torch.softmax(x, dim=axis)
def _gelu(x):
    return torch.nn.functional.gelu(x, approximate="tanh")
def _silu(x):
    return torch.nn.functional.silu(x)
def _sigmoid(x):
    return torch.sigmoid(x)
def _layernorm(x, axis=-1, eps=1e-5):
    m = x.mean(dim=axis, keepdim=True)
    v = x.var(dim=axis, keepdim=True, unbiased=False)
    return (x - m) / torch.sqrt(v + eps)
def _scatter_add(tgt, idx, src, axis=0):
    return tgt.clone().index_add_(axis, idx, src)
def _segment_sum(src, seg, n):
    out = torch.zeros((n,) + src.shape[1:], dtype=src.dtype)
    return out.index_add_(0, seg, src)
def _pad(x, pw):
    flat = tuple(v for pair in reversed(pw) for v in pair)
    return torch.nn.functional.pad(x, flat)

kernel_name = 'recurrent_scan__spectral_gfnet__glu_gated_bilinear__prompt'

def setup_inputs():

    _w = (lambda a: (lambda t: t.to(torch.bfloat16) if t.is_floating_point() else t)(torch.as_tensor(a)))
    def _A_setup():
        B, S, D = 1, 2048, 1024
        Df = D // 2 + 1
        return {
            "x": _w((lambda *s: torch.randn(*s, dtype=torch.bfloat16) * 0.2)(B, S, D)),
            "w_r": _w((lambda *s: torch.randn(*s, dtype=torch.bfloat16) * 1.6)(S, Df) * 0.02),
            "w_i": _w((lambda *s: torch.randn(*s, dtype=torch.bfloat16) * 1.6)(S, Df) * 0.02),
        }
    _A_in = _A_setup()

    def _B_setup():
        B, S, D, F = 1, 2048, 1024, 3584
        return {
            "x": _w((lambda *s: torch.randn(*s, dtype=torch.bfloat16) * 0.2)(B, S, D)),
            "w_gate": _w((lambda *s: torch.randn(*s, dtype=torch.bfloat16) * 0.8)(D, F) * (D ** -0.5)),
            "w_up": _w((lambda *s: torch.randn(*s, dtype=torch.bfloat16) * 0.8)(D, F) * (D ** -0.5)),
            "w_down": _w((lambda *s: torch.randn(*s, dtype=torch.bfloat16) * 0.8)(F, D) * (F ** -0.5)),
        }
    _B_in = _B_setup()

    return {
        "A_x": _A_in["x"],
        "A_w_r": _A_in["w_r"],
        "A_w_i": _A_in["w_i"],
        "B_x": _B_in["x"],
        "B_w_gate": _B_in["w_gate"],
        "B_w_up": _B_in["w_up"],
        "B_w_down": _B_in["w_down"],
    }

def reference(A_x, A_w_r, A_w_i, B_x, B_w_gate, B_w_up, B_w_down):
    def _A_ref(x, w_r, w_i):
        B, S, D = x.shape
        X = (lambda x, axes=(-2,-1): torch.fft.rfft2(x.float(), dim=axes))(x, axes=(-2, -1))
        W = w_r + 1j * w_i
        X = X * W
        y = (lambda x, s, axes=(-2,-1): torch.fft.irfft2(x, s=s, dim=axes).to(torch.bfloat16))(X, (S, D), axes=(-2, -1))
        return y

    def _B_ref(x, w_gate, w_up, w_down):
        g = torch.einsum("bsd,df->bsf", x, w_gate)
        u = torch.einsum("bsd,df->bsf", x, w_up)
        h = g * u
        return torch.einsum("bsf,fd->bsd", h, w_down)

    x = A_x
    xn = _layernorm(x, axis=-1)
    s = _A_ref(xn, A_w_r, A_w_i)
    g = _silu(_B_ref(xn, B_w_gate, B_w_up, B_w_down))
    return x + s * g
```

```python
import re
TRANS=('v_exp_f32','v_log_f32','v_rcp_f32','v_rsq_f32','v_sqrt_f32','v_sin_f32','v_cos_f32')
def regs(tok):
    tok=tok.strip().lstrip('-').strip('|')
    m=re.match(r'^([vsa])\[(\d+):(\d+)\]$',tok)
    if m: return {(m.group(1),i) for i in range(int(m.group(2)),int(m.group(3))+1)}
    m=re.match(r'^([vsa])(\d+)$',tok)
    if m: return {(m.group(1),int(m.group(2)))}
    if tok=='vcc': return {('s','vcc')}
    if tok=='m0': return {('s','m0')}
    return set()
def V(b,n=1): return f'v{b}' if n==1 else f'v[{b}:{b+n-1}]'
def S(b,n=1): return f's{b}' if n==1 else f's[{b}:{b+n-1}]'
def A(b,n=1): return f'a{b}' if n==1 else f'a[{b}:{b+n-1}]'
class Asm:
    def __init__(s): s.l=[]; s.h=[]
    def raw(s,t): s.l.append(t)
    def label(s,n): s.l.append(n+':')
    def analyze(s,t):
        op=t.split()[0]; rest=re.sub(r'(neg_lo|neg_hi|op_sel|op_sel_hi|quad_perm):\[[^\]]*\]','',t[len(op):])
        ops=[o.strip().split(' ')[0] for o in rest.split(',')] if rest.strip() else []
        R=[regs(o) for o in ops]; U=lambda x:set().union(*x) if x else set()
        d=dict(op=op,kind='other',dst=set(),src=set(),ab=set(),c=set(),dpp=('quad_perm' in t or 'row_' in t),data=set())
        if op.startswith('v_mfma'):
            d.update(kind='mfma',dst=R[0],ab=R[1]|R[2],c=R[3],src=R[1]|R[2]|R[3]); d['p']=8 if '32x32' in op else 4
        elif op.startswith('v_permlane'):
            d.update(kind='valu',dst=R[0]|R[1],src=R[0]|R[1])
        elif op.startswith('v_'):
            d.update(kind='valu',dst=R[0],src=U(R[1:]))
            if op.startswith(('v_fmac','v_writelane','v_pk_fmac')) or d['dpp']: d['src']|=R[0]
            if '_co_' in op: d['dst']|=R[1]
        elif op.startswith(('buffer_load','global_load')):
            if ' lds' in t: d.update(kind='vmem',src=U(R)|{('s','m0')})
            else: d.update(kind='vmem',dst=R[0],src=U(R[1:]))
        elif op.startswith(('buffer_store','global_store','buffer_atomic','global_atomic')):
            d.update(kind='vmem',src=U(R))
            if 'x4' in op or 'x3' in op: d['data']=R[0] if op.startswith('buffer') else R[1]
        elif op.startswith('ds_read'): d.update(kind='ds',dst=R[0],src=U(R[1:]))
        elif op.startswith('ds_'): d.update(kind='ds',src=U(R))
        elif op.startswith('s_') and R and not op.startswith(('s_cmp','s_waitcnt','s_nop','s_cbranch','s_branch')):
            d.update(kind='salu',dst=R[0],src=U(R[1:]))
        return d
    def need(s,p,c):
        n=0; pk,ck=p['kind'],c['kind']
        vd={r for r in p['dst'] if r[0]!='s'}; sd={r for r in p['dst'] if r[0]=='s'}
        if pk=='valu':
            if ck=='mfma' and vd&c['src']: n=max(n,2)
            if p['op'].startswith(TRANS) and vd&c['src']: n=max(n,1)
            if ck=='valu' and vd&c['src']:
                if c['dpp'] or c['op'].startswith('v_permlane'): n=max(n,2)
                if c['op'].startswith(('v_readlane','v_readfirstlane')): n=max(n,1)
            if sd&c['src']:
                if ck=='valu': n=max(n,4 if c['op'].startswith(('v_readlane','v_writelane')) else 2)
                if ck=='vmem': n=max(n,5)
                if ck=='salu': n=max(n,1)
            if c['op'].startswith('v_cndmask') and ('s','vcc') in sd: n=max(n,2)
        if pk=='mfma':
            big=12 if p['p']==8 else 8
            if ck=='mfma':
                if vd&c['ab']: n=max(n,big)
                if vd&c['c'] and vd!=c['c']: n=max(n,big-2)
                if vd&c['dst'] and vd!=c['c']: n=max(n,big)
            elif ck in('valu','vmem','ds'):
                if vd&(c['src']|c['dst']): n=max(n,big)
                if ck=='valu' and p['c']&c['dst']: n=max(n,7 if p['p']==8 else 3)
        if pk=='salu' and ('s','m0') in sd and ('s','m0') in c['src'] and ck=='vmem': n=max(n,1)
        if pk=='vmem' and p['data']&c['dst']: n=max(n,2)
        return n
    def __call__(s,t):
        for t1 in t.strip().split('\n'):
            t1=t1.split(';')[0].strip()
            if not t1: continue
            if t1.endswith(":") or t1.startswith("."): s.l.append(t1); continue
            c=s.analyze(t1); dist=0; pad=0
            for p in reversed(s.h[-24:]):
                pad=max(pad,s.need(p,c)-dist); dist+=p['w']
            while pad>0:
                k=min(pad,16); s.l.append(f'  s_nop {k-1}'); s.h.append(dict(op='s_nop',kind='other',dst=set(),src=set(),data=set(),w=k)); pad-=k
            c['w']=(int(t1.split()[1])+1) if c['op']=='s_nop' else 1
            s.h.append(c); s.l.append('  '+t1)
    def text(s): return '\n'.join(s.l)+'\n'
def kernel_head(name): return f'.text\n.globl {name}\n.p2align 8\n.type {name},@function\n{name}:\n'
def kernel_desc(name,vgpr,sgpr=96,acc=None):
    acc=acc or (vgpr+3)//4*4
    return f'''.section .rodata,"a"
.p2align 6
.amdhsa_kernel {name}
  .amdhsa_next_free_vgpr {vgpr}
  .amdhsa_next_free_sgpr {sgpr}
  .amdhsa_accum_offset {acc}
  .amdhsa_group_segment_fixed_size 0
  .amdhsa_kernarg_size 80
  .amdhsa_user_sgpr_count 2
  .amdhsa_user_sgpr_kernarg_segment_ptr 1
  .amdhsa_system_sgpr_workgroup_id_x 1
.end_amdhsa_kernel
'''
def srd(a,d,base,off,nbytes):
    if off: a(f's_add_u32 s{d}, s{base}, {hex(off)}\ns_addc_u32 s{d+1}, s{base+1}, 0')
    else: a(f's_mov_b32 s{d}, s{base}\ns_mov_b32 s{d+1}, s{base+1}')
    a(f's_mov_b32 s{d+2}, {hex(nbytes)}\ns_mov_b32 s{d+3}, 0x20000')
MB=1<<20
WS_XN=0; WS_X1=4*MB; WS_H=8*MB; WS_Z=24*MB; WS_S=28*MB
WS_WT=36*MB
H_BYTES=2048*3584*2
import struct
def f2h(x): return hex(struct.unpack('<I',struct.pack('<f',x))[0])
def stamp(a,o,i=None):
    if not o.get('dbg'): return
    if i==0: a.ns=0
    i=a.ns; a.ns+=1
    a(f's_memtime s[54:55]\ns_memrealtime s[56:57]\ns_waitcnt lgkmcnt(0)\ns_mov_b32 s{64+2*i}, s54\ns_mov_b32 s{65+2*i}, s56')
def stamp_out(a,o,n,lab,wgs=(0,203)):
    if not o.get('dbg'): return
    a('s_waitcnt vmcnt(0) lgkmcnt(0)'); stamp(a,o); n=a.ns
    a(f's_load_dwordx2 s[60:61], s[0:1], 64\ns_waitcnt lgkmcnt(0)\ns_mov_b32 s62, 256\ns_mov_b32 s63, 0x20000\ns_cmp_lg_u32 s20, 0\ns_cbranch_scc1 {lab}\ns_mov_b32 s59, 1000')
    for j,w in enumerate(wgs): a(f's_cmp_eq_u32 s2, {w}\ns_cselect_b32 s59, {j*128}, s59')
    a('v_mov_b32 v1, s59')
    for i in range(1,n):
        for z in range(2): a(f's_sub_u32 s58, s{64+2*i+z}, s{64+z}\nv_mov_b32 v0, s58\nbuffer_store_dword v0, v1, s[60:63], 0 offen offset:{4*(i-1)+64*z}')
    a(f'v_mov_b32 v0, s65\nbuffer_store_dword v0, v1, s[60:63], 0 offen offset:124\n{lab}:')
```

```python
from asm import *
def kbase(t,e): return 16*t+(e&3)+8*(e>>2)
def gen_cs(a,dC,dS,vstep,voff,tmp,nt=2,pack=True,scale=None):
    for t in range(nt):
        for q in range(4):
            for z in range(2):
                kb=kbase(t,2*q+z)
                a(f'v_fmamk_f32 v{tmp+z}, v{vstep}, {f2h(float(kb))}, v{voff}')
            if pack:
                a(f'v_cos_f32 v{tmp+2}, v{tmp}\nv_cos_f32 v{tmp+3}, v{tmp+1}\nv_sin_f32 v{tmp}, v{tmp}\nv_sin_f32 v{tmp+1}, v{tmp+1}')
                a(f'v_cvt_pk_bf16_f32 v{dC+4*t+q}, v{tmp+2}, v{tmp+3}\nv_cvt_pk_bf16_f32 v{dS+4*t+q}, v{tmp}, v{tmp+1}')
            else:
                for z in range(2): a(f'v_cos_f32 v{dC+8*t+2*q+z}, v{tmp+z}\nv_sin_f32 v{dS+8*t+2*q+z}, v{tmp+z}')
def wave_sum2(a,r0,r1,s0,s1):
    for m in ['quad_perm:[1,0,3,2] row_mask:0xf','quad_perm:[2,3,0,1] row_mask:0xf','row_half_mirror row_mask:0xf','row_mirror row_mask:0xf','row_bcast:15 row_mask:0xa','row_bcast:31 row_mask:0xc']:
        for r in (r0,r1): a(f'v_add_f32_dpp v{r}, v{r}, v{r} {m} bank_mask:0xf')
    a(f'v_readlane_b32 s{s0}, v{r0}, 63\nv_readlane_b32 s{s1}, v{r1}, 63')
def rbf(a,r): a(f'v_cvt_pk_bf16_f32 v{r}, v{r}, v{r}\nv_and_b32 v{r}, 0xffff0000, v{r}')
def mfma(a,d,x,y,c=None): a(f'v_mfma_f32_32x32x16_bf16 {V(d,16)}, {V(x,4)}, {V(y,4)}, '+(V(d,16) if c is None else str(c)))
def cmul(a,xr,xi,tc,ts,tmp,conj=False):
    n1,n2=('','-') if conj else ('-','')
    a(f'v_mul_f32 v{tmp}, v{xr}, v{ts}\nv_mul_f32 v{xr}, v{xr}, v{tc}\nv_fma_f32 v{xr}, {n1}v{xi}, v{ts}, v{xr}\nv_fma_f32 v{xi}, v{xi}, v{tc}, {n2}v{tmp}')
def cmul2(a,xr,xi,tc,ts,tmp):
    a(f'''v_pk_mul_f32 {V(tmp,2)}, {V(xr,2)}, {V(ts,2)}
    v_pk_mul_f32 {V(xr,2)}, {V(xr,2)}, {V(tc,2)}
    v_pk_fma_f32 {V(xr,2)}, {V(xi,2)}, {V(ts,2)}, {V(xr,2)} neg_lo:[1,0,0] neg_hi:[1,0,0]
    v_pk_fma_f32 {V(xi,2)}, {V(xi,2)}, {V(tc,2)}, {V(tmp,2)}''')
def k0(o):
    a=Asm(); a.raw(kernel_head('k0_kernel'))
    a('''s_cmp_ge_u32 s2, 256
    s_cbranch_scc1 k0_end''')
    stamp(a,o,0)
    a('''    s_load_dwordx2 s[4:5], s[0:1], 0
    s_load_dwordx2 s[6:7], s[0:1], 72
    s_load_dwordx4 s[32:35], s[0:1], 8
    v_lshrrev_b32 v1, 6, v0
    v_and_b32 v2, 63, v0
    v_readfirstlane_b32 s20, v1
    s_lshr_b32 s21, s2, 6
    s_and_b32 s22, s2, 63
    s_lshr_b32 s23, s21, 1
    s_lshl_b32 s23, s23, 4
    s_and_b32 s21, s21, 1
    s_lshl_b32 s21, s21, 2
    s_add_u32 s23, s23, s21
    s_and_b32 s24, s20, 1
    s_lshl_b32 s24, s24, 1
    s_add_u32 s23, s23, s24
    s_lshr_b32 s24, s20, 1
    s_lshl_b32 s24, s24, 3
    s_add_u32 s23, s23, s24
    s_lshl_b32 s23, s23, 6
    s_add_u32 s23, s23, s22
    s_lshl_b32 s23, s23, 11
    s_add_u32 s24, s23, 0x20000
    v_lshlrev_b32 v3, 4, v2
    s_waitcnt lgkmcnt(0)''')
    srd(a,8,4,0,4*MB); srd(a,12,6,WS_XN,4*MB); srd(a,16,6,WS_X1,4*MB)
    a('''buffer_load_dwordx4 v[4:7], v3, s[8:11], s23 offen
    buffer_load_dwordx4 v[8:11], v3, s[8:11], s23 offen offset:1024
    buffer_load_dwordx4 v[12:15], v3, s[8:11], s24 offen
    buffer_load_dwordx4 v[16:19], v3, s[8:11], s24 offen offset:1024''')
    srd(a,36,32,0,2048*1026); srd(a,40,34,0,2048*1026); srd(a,44,6,WS_WT,8*MB)
    a(f'''s_lshr_b32 s30, s2, 5
    s_lshl_b32 s30, s30, 8
    s_and_b32 s31, s2, 31
    s_add_u32 s30, s30, s31
    s_mul_i32 s30, s30, 1026
    s_lshl_b32 s31, s2, 14
    s_mov_b32 s48, 0x05040100
    s_mov_b32 s49, 0x07060302
    v_lshrrev_b32 v190, 7, v0
    v_and_b32 v191, 127, v0
    v_mul_u32_u24 v192, {128*1026}, v190
    v_lshl_add_u32 v192, v191, 3, v192
    v_lshlrev_b32 v190, 13, v190
    v_lshl_add_u32 v190, v191, 6, v190
    v_mul_u32_u24 v193, {32*1026}, v0
    v_add_u32 v193, 1024, v193
    v_lshrrev_b32 v191, 2, v0
    v_lshlrev_b32 v191, 13, v191
    v_and_b32 v194, 3, v0
    v_lshl_add_u32 v191, v194, 1, v191
    v_add_u32 v191, {4*MB}, v191
    v_cmp_gt_u32 vcc, 8, v0
    v_mov_b32 v194, 0x7fffffff
    v_cndmask_b32 v193, v194, v193, vcc
    v_cndmask_b32 v191, v194, v191, vcc
    buffer_load_ushort v194, v193, s[36:39], s30 offen
    buffer_load_ushort v195, v193, s[40:43], s30 offen''')
    for i in range(4): a(f'buffer_load_dwordx2 {V(196+2*i,2)}, v192, s[36:39], s30 offen\nbuffer_load_dwordx2 {V(204+2*i,2)}, v192, s[40:43], s30 offen\ns_add_u32 s30, s30, {32*1026}')
    C1,S1,A1,A2,TC,TS=52,60,68,76,84,100
    a(f'''v_and_b32 v20, 31, v2
    v_lshrrev_b32 v21, 5, v2
    v_cvt_f32_u32 v22, v20
    v_cvt_f32_u32 v23, v21
    v_mul_f32 v23, 4.0, v23
    v_mul_f32 v24, {f2h(-1/32)}, v22
    v_mul_f32 v25, v23, v24''')
    gen_cs(a,C1,S1,24,25,28)
    a(f'v_mul_f32 v24, {f2h(-1/1024)}, v22\nv_mul_f32 v25, v23, v24')
    gen_cs(a,TC,TS,24,25,28,pack=False)
    a(f'''v_and_b32 v26, 15, v2
    v_cvt_f32_u32 v26, v26
    v_mul_f32 v24, {f2h(1/32)}, v26
    v_bfe_u32 v27, v2, 4, 1
    v_cvt_f32_u32 v27, v27
    v_mul_f32 v27, {f2h(0.25)}, v27
    v_fma_f32 v25, v23, v24, v27''')
    gen_cs(a,A1,A2,24,25,28)
    a('''s_lshl_b32 s25, s20, 12
    v_add_u32 v180, s25, v3
    v_bfe_u32 v26, v2, 2, 2
    v_lshl_add_u32 v26, v21, 2, v26
    v_lshlrev_b32 v26, 6, v26
    v_bfe_u32 v27, v2, 4, 1
    v_lshl_add_u32 v26, v27, 5, v26
    v_and_b32 v27, 3, v2
    v_lshl_add_u32 v26, v27, 3, v26
    v_add_u32 v181, s25, v26
    v_lshlrev_b32 v26, 3, v20
    v_lshl_add_u32 v26, v21, 10, v26
    v_add_u32 v182, s25, v26
    s_waitcnt vmcnt(10)''')
    stamp(a,o)
    F=[20,36]; R=[4,12]
    for r in range(2):
        for q in range(8): a(f'v_lshlrev_b32 v{F[r]+2*q}, 16, v{R[r]+q}\nv_and_b32 v{F[r]+2*q+1}, 0xffff0000, v{R[r]+q}')
    for r in range(2): a(f'v_add_f32 v{4+r}, v{F[r]}, v{F[r]+1}')
    for q in range(2,16):
        for r in range(2): a(f'v_add_f32 v{4+r}, v{4+r}, v{F[r]+q}')
    wave_sum2(a,4,5,26,27)
    for r in range(2): a(f'v_mov_b32 v{6+r}, {f2h(1/1024)}\nv_mul_f32 v{6+r}, s{26+r}, v{6+r}')
    for q in range(16):
        for r in range(2):
            a(f'v_sub_f32 v{8+r}, v{F[r]+q}, v{6+r}')
        for r in range(2):
            a(f'v_mul_f32 v{4+r}, v{8+r}, v{8+r}' if q==0 else f'v_fmac_f32 v{4+r}, v{8+r}, v{8+r}')
    wave_sum2(a,4,5,26,27)
    for r in range(2):
        a(f'v_mov_b32 v{4+r}, {f2h(1/1024)}\nv_mul_f32 v{4+r}, s{26+r}, v{4+r}'); rbf(a,4+r)
        a(f'v_add_f32 v{4+r}, {f2h(1e-5)}, v{4+r}'); rbf(a,4+r)
        a(f'v_sqrt_f32 v{4+r}, v{4+r}'); rbf(a,4+r)
        a(f'v_rcp_f32 v{183+r}, v{4+r}'); rbf(a,6+r)
        a(f'v_mov_b32 v{185+r}, v{6+r}')
    for r in range(2):
        for q in range(8):
            x=F[r]+2*q; d=R[r]+q
            a(f'''v_sub_f32 v{x}, v{x}, v{185+r}
            v_sub_f32 v{x+1}, v{x+1}, v{185+r}
            v_cvt_pk_bf16_f32 v{x+1}, v{x}, v{x+1}
            v_lshlrev_b32 v{x}, 16, v{x+1}
            v_and_b32 v{x+1}, 0xffff0000, v{x+1}
            v_mul_f32 v{x}, v{x}, v{183+r}
            v_mul_f32 v{x+1}, v{x+1}, v{183+r}
            v_cvt_pk_bf16_f32 v{d}, v{x}, v{x+1}''')
        a(f'''ds_write_b128 v180, {V(R[r],4)} offset:{2048*r}
        ds_write_b128 v180, {V(R[r]+4,4)} offset:{2048*r+1024}
        buffer_store_dwordx4 {V(R[r],4)}, v3, s[12:15], s{23+r} offen
        buffer_store_dwordx4 {V(R[r]+4,4)}, v3, s[12:15], s{23+r} offen offset:1024''')
    a('s_waitcnt lgkmcnt(0)')
    for r in range(2):
        for t in range(2):
            for e2 in range(2): a(f'ds_read_b64_tr_b16 {V(F[r]+4*t+2*e2,2)}, v181 offset:{2048*r+(16*t+8*e2)*64}')
    a('s_waitcnt vmcnt(4)\nbuffer_store_short v194, v191, s[44:47], s31 offen\nbuffer_store_short v195, v191, s[44:47], s31 offen offset:8')
    for c in range(4):
        for z in range(4): a(f'v_perm_b32 v{212+4*c+z}, v{196+4*z+2+(c>>1)}, v{196+4*z+(c>>1)}, s{48+(c&1)}')
        a(f'buffer_store_dwordx4 {V(212+4*c,4)}, v190, s[44:47], s31 offen offset:{16*c}')
    a('s_waitcnt lgkmcnt(0)')
    YR=[116,148]; YI=[132,164]
    for r in range(2):
        mfma(a,YR[r],F[r],C1,0); mfma(a,YI[r],F[r],S1,0); mfma(a,YR[r],F[r]+4,C1+4); mfma(a,YI[r],F[r]+4,S1+4)
    for r in range(2):
        a(f'v_sub_f32 v{187+r}, v{YR[r]}, v{YR[r]+1}')
        for q in range(2,16): a(f'v_{"add" if q%2==0 else "sub"}_f32 v{187+r}, v{187+r}, v{YR[r]+q}')
        a(f'v_readlane_b32 s{28+r}, v{187+r}, 32')
        for q in range(0,16,2): cmul2(a,YR[r]+q,YI[r]+q,TC+q,TS+q,4)
        a(f'v_add_f32 v{187+r}, s{28+r}, v{187+r}')
        for q in range(8): a(f'v_cvt_pk_bf16_f32 v{F[r]+q}, v{YR[r]+2*q}, v{YR[r]+2*q+1}\nv_cvt_pk_bf16_f32 v{F[r]+8+q}, v{YI[r]+2*q}, v{YI[r]+2*q+1}')
        mfma(a,YR[r],A1,F[r],0); mfma(a,YR[r],A1+4,F[r]+4); mfma(a,YR[r],A2,F[r]+8); mfma(a,YR[r],A2+4,F[r]+12)
    a('v_cmp_eq_u32 vcc, 0, v2')
    for r in range(2):
        a(f'''v_mul_f32 v{187+r}, 0.5, v{187+r}
        v_mul_f32 v189, 0.5, v{YR[r]}
        v_cndmask_b32 v{YR[r]}, v{YR[r]}, v189, vcc
        v_cndmask_b32 v{YR[r]+8}, v{YR[r]+8}, v{187+r}, vcc''')
    for q in range(8):
        a(f'''v_cvt_pk_bf16_f32 v{20+2*q}, v{YR[0]+q}, v{YR[1]+q}
        v_cvt_pk_bf16_f32 v{21+2*q}, v{YR[0]+8+q}, v{YR[1]+8+q}
        ds_write_b64 v182, {V(20+2*q,2)} offset:{(8*(q>>2)+(q&3))*256}''')
    a('''v_lshlrev_b32 v1, 2, v0
    v_lshlrev_b32 v3, 4, v0
    s_lshl_b32 s23, s2, 14
    s_waitcnt lgkmcnt(0)
    s_barrier''')
    for u in range(4):
        a(f'ds_read2st64_b32 {V(36+4*u,2)}, v1 offset0:{4*u} offset1:{16+4*u}\nds_read2st64_b32 {V(38+4*u,2)}, v1 offset0:{32+4*u} offset1:{48+4*u}')
    for u in range(4):
        a(f's_waitcnt lgkmcnt({6-2*u})\nbuffer_store_dwordx4 {V(36+4*u,4)}, v3, s[16:19], s23 offen\ns_add_u32 s23, s23, 4096')
    stamp(a,o); stamp_out(a,o,0,'k0_dbg')
    a('k0_end:\ns_endpgm')
    return a.text(), kernel_desc('k0_kernel',228), '; @launch kernel=k0_kernel grid=(256,1,1) block=(256,1,1) lds=16384'
```

```python
import sys,importlib
from asm import *
NAME='recurrent_scan__spectral_gfnet__glu_gated_bilinear__prompt'
def build(parts,out,seq=None):
    ref=open(f'cdna_kernels/{NAME}.s.ref').read().split('\n')
    head=[l for l in ref if l.startswith(';') and '@launch' not in l and 'Override' not in l and 'grid=ceil' not in l]
    t='\n'.join(head)+'\n'+'\n'.join(parts[int(i)][2] for i in (seq or range(len(parts))))+'\n.amdgcn_target "amdgcn-amd-amdhsa--gfx950"\n'
    t+=''.join(p[0] for p in parts)+''.join(p[1] for p in parts)
    open(out,'w').write(t)
if __name__=='__main__':
    import k0
    opts=dict(x.split('=') for x in sys.argv[2:])
    parts=[] if opts.get('f0') else [k0.k0(opts)]
    for m in ('k1','k1b','k2'):
        try: mod=importlib.import_module(m)
        except ModuleNotFoundError: continue
        p=getattr(mod,m)(opts)
        if p: parts.append(p)
    for i in range(int(opts.get('nop',0))):
        parts.insert(int(opts.get('nopat',1)),(kernel_head(f'n{i}_kernel')+'s_endpgm\n',kernel_desc(f'n{i}_kernel',8),f'; @launch kernel=n{i}_kernel grid=(1,1,1) block=(64,1,1) lds=0'))
    if opts.get('one'): parts=[tuple(x.replace('kernel=k1_kernel ','').replace('k1_kernel',NAME+'_kernel') for x in parts[0])]
    build(parts,sys.argv[1] if len(sys.argv)>1 else f'cdna_kernels/{NAME}.s',opts.get('seq'))
```

```python
from asm import *
def kbase(t,e): return 16*t+(e&3)+8*(e>>2)
def gen_cs(a,dC,dS,vstep,voff,tmp,nt=2,pack=True,kbase=kbase):
    for t in range(nt):
        for q in range(4):
            for z in range(2):
                kb=kbase(t,2*q+z)
                a(f'v_fmamk_f32 v{tmp+z}, v{vstep}, {f2h(float(kb))}, v{voff}')
            if pack:
                a(f'v_cos_f32 v{tmp+2}, v{tmp}\nv_cos_f32 v{tmp+3}, v{tmp+1}\nv_sin_f32 v{tmp}, v{tmp}\nv_sin_f32 v{tmp+1}, v{tmp+1}')
                a(f'v_cvt_pk_bf16_f32 v{dC+4*t+q}, v{tmp+2}, v{tmp+3}\nv_cvt_pk_bf16_f32 v{dS+4*t+q}, v{tmp}, v{tmp+1}')
            else:
                for z in range(2): a(f'v_cos_f32 v{dC+8*t+2*q+z}, v{tmp+z}\nv_sin_f32 v{dS+8*t+2*q+z}, v{tmp+z}')
def wave_sum2(a,r0,r1,s0,s1):
    for m in ['quad_perm:[1,0,3,2] row_mask:0xf','quad_perm:[2,3,0,1] row_mask:0xf','row_half_mirror row_mask:0xf','row_mirror row_mask:0xf','row_bcast:15 row_mask:0xa','row_bcast:31 row_mask:0xc']:
        for r in (r0,r1): a(f'v_add_f32_dpp v{r}, v{r}, v{r} {m} bank_mask:0xf')
    a(f'v_readlane_b32 s{s0}, v{r0}, 63\nv_readlane_b32 s{s1}, v{r1}, 63')
def rbf(a,r): a(f'v_cvt_pk_bf16_f32 v{r}, v{r}, v{r}\nv_and_b32 v{r}, 0xffff0000, v{r}')
def mfma(a,d,x,y,c=None): a(f'v_mfma_f32_32x32x16_bf16 {V(d,16)}, {V(x,4)}, {V(y,4)}, '+(V(d,16) if c is None else str(c)))
def cmul(a,xr,xi,tc,ts,tmp,conj=False):
    n1,n2=('','-') if conj else ('-','')
    a(f'v_mul_f32 v{tmp}, v{xr}, v{ts}\nv_mul_f32 v{xr}, v{xr}, v{tc}\nv_fma_f32 v{xr}, {n1}v{xi}, v{ts}, v{xr}\nv_fma_f32 v{xi}, v{xi}, v{tc}, {n2}v{tmp}')
def cmul2(a,xr,xi,tc,ts,tmp):
    a(f'''v_pk_mul_f32 {V(tmp,2)}, {V(xr,2)}, {V(ts,2)}
    v_pk_mul_f32 {V(xr,2)}, {V(xr,2)}, {V(tc,2)}
    v_pk_fma_f32 {V(xr,2)}, {V(xi,2)}, {V(ts,2)}, {V(xr,2)} neg_lo:[1,0,0] neg_hi:[1,0,0]
    v_pk_fma_f32 {V(xi,2)}, {V(xi,2)}, {V(tc,2)}, {V(tmp,2)}''')
def k0(o):
    a=Asm(); a.raw(kernel_head('k0_kernel'))
    a('''s_cmp_ge_u32 s2, 256
    s_cbranch_scc1 k0_end''')
    stamp(a,o,0)
    a('''    s_load_dwordx2 s[4:5], s[0:1], 0
    s_load_dwordx2 s[6:7], s[0:1], 72
    s_load_dwordx4 s[32:35], s[0:1], 8
    s_load_dwordx4 s[80:83], s[0:1], 32
    v_lshrrev_b32 v1, 6, v0
    v_and_b32 v2, 63, v0
    v_readfirstlane_b32 s20, v1
    s_lshr_b32 s21, s2, 6
    s_and_b32 s22, s2, 63
    s_lshr_b32 s23, s21, 1
    s_lshl_b32 s23, s23, 4
    s_and_b32 s21, s21, 1
    s_lshl_b32 s21, s21, 2
    s_add_u32 s23, s23, s21
    s_and_b32 s24, s20, 1
    s_lshl_b32 s24, s24, 1
    s_add_u32 s23, s23, s24
    s_lshr_b32 s24, s20, 1
    s_lshl_b32 s24, s24, 3
    s_add_u32 s23, s23, s24
    s_lshl_b32 s23, s23, 6
    s_add_u32 s23, s23, s22
    s_lshl_b32 s23, s23, 11
    s_add_u32 s24, s23, 0x20000
    v_lshlrev_b32 v3, 4, v2
    s_waitcnt lgkmcnt(0)''')
    srd(a,8,4,0,4*MB); srd(a,12,6,WS_XN,4*MB); srd(a,16,6,WS_X1,4*MB)
    a('''buffer_load_dwordx4 v[4:7], v3, s[8:11], s23 offen
    buffer_load_dwordx4 v[8:11], v3, s[8:11], s23 offen offset:1024
    buffer_load_dwordx4 v[12:15], v3, s[8:11], s24 offen
    buffer_load_dwordx4 v[16:19], v3, s[8:11], s24 offen offset:1024''')
    srd(a,36,32,0,2048*1026); srd(a,40,34,0,2048*1026); srd(a,44,6,WS_WT,8*MB)
    a(f'''s_lshr_b32 s30, s2, 5
    s_lshl_b32 s30, s30, 8
    s_and_b32 s31, s2, 31
    s_add_u32 s30, s30, s31
    s_mul_i32 s30, s30, 1026
    s_lshl_b32 s31, s2, 14
    s_mov_b32 s48, 0x05040100
    s_mov_b32 s49, 0x07060302
    v_lshrrev_b32 v190, 7, v0
    v_and_b32 v191, 127, v0
    v_mul_u32_u24 v192, {128*1026}, v190
    v_lshl_add_u32 v192, v191, 3, v192
    v_lshlrev_b32 v190, 13, v190
    v_lshl_add_u32 v190, v191, 6, v190
    v_mul_u32_u24 v193, {32*1026}, v0
    v_add_u32 v193, 1024, v193
    v_lshrrev_b32 v191, 2, v0
    v_lshlrev_b32 v191, 13, v191
    v_and_b32 v194, 3, v0
    v_lshl_add_u32 v191, v194, 1, v191
    v_add_u32 v191, {4*MB}, v191
    v_cmp_gt_u32 vcc, 8, v0
    v_mov_b32 v194, 0x7fffffff
    v_cndmask_b32 v193, v194, v193, vcc
    v_cndmask_b32 v191, v194, v191, vcc
    buffer_load_ushort v194, v193, s[36:39], s30 offen
    buffer_load_ushort v195, v193, s[40:43], s30 offen''')
    for i in range(4): a(f'buffer_load_dwordx2 {V(196+2*i,2)}, v192, s[36:39], s30 offen\nbuffer_load_dwordx2 {V(204+2*i,2)}, v192, s[40:43], s30 offen\ns_add_u32 s30, s30, {32*1026}')
    pf=int(o.get('pf0',1)); sc=' '+o.get('sc0','')
    def prefetch():
        srd(a,84,80,0,1024*7168); srd(a,88,82,0,1024*7168)
        a('s_lshl_b32 s80, s2, 15\nv_lshlrev_b32 v229, 7, v0\nbuffer_load_dword v228, v229, s[84:87], s80 offen\nbuffer_load_dword v228, v229, s[88:91], s80 offen')
    if pf==1: prefetch()
    C1,S1,A1,A2,TC,TS=52,60,68,76,84,100
    a(f'''v_and_b32 v20, 31, v2
    v_lshrrev_b32 v21, 5, v2
    v_cvt_f32_u32 v22, v20
    v_cvt_f32_u32 v23, v21
    v_mul_f32 v23, 4.0, v23
    v_mul_f32 v24, {f2h(-1/32)}, v22
    v_mul_f32 v25, v23, v24''')
    gen_cs(a,C1,S1,24,25,28)
    a(f'v_mul_f32 v24, {f2h(-1/1024)}, v22\nv_mul_f32 v25, v23, v24')
    gen_cs(a,TC,TS,24,25,28,pack=False)
    a(f'''v_and_b32 v26, 15, v2
    v_cvt_f32_u32 v26, v26
    v_mul_f32 v24, {f2h(1/32)}, v26
    v_bfe_u32 v27, v2, 4, 1
    v_cvt_f32_u32 v27, v27
    v_mul_f32 v27, {f2h(0.25)}, v27
    v_fma_f32 v25, v23, v24, v27''')
    gen_cs(a,A1,A2,24,25,28)
    a('''s_lshl_b32 s25, s20, 12
    v_add_u32 v180, s25, v3
    v_bfe_u32 v26, v2, 2, 2
    v_lshl_add_u32 v26, v21, 2, v26
    v_lshlrev_b32 v26, 6, v26
    v_bfe_u32 v27, v2, 4, 1
    v_lshl_add_u32 v26, v27, 5, v26
    v_and_b32 v27, 3, v2
    v_lshl_add_u32 v26, v27, 3, v26
    v_add_u32 v181, s25, v26
    v_lshlrev_b32 v26, 3, v20
    v_lshl_add_u32 v26, v21, 10, v26
    v_add_u32 v182, s25, v26
    ''')
    a(f's_waitcnt vmcnt({12 if pf==1 else 10})')
    stamp(a,o)
    F=[20,36]; R=[4,12]
    for r in range(2):
        for q in range(8): a(f'v_lshlrev_b32 v{F[r]+2*q}, 16, v{R[r]+q}\nv_and_b32 v{F[r]+2*q+1}, 0xffff0000, v{R[r]+q}')
    for r in range(2): a(f'v_add_f32 v{4+r}, v{F[r]}, v{F[r]+1}')
    for q in range(2,16):
        for r in range(2): a(f'v_add_f32 v{4+r}, v{4+r}, v{F[r]+q}')
    wave_sum2(a,4,5,26,27)
    for r in range(2): a(f'v_mov_b32 v{6+r}, {f2h(1/1024)}\nv_mul_f32 v{6+r}, s{26+r}, v{6+r}')
    for q in range(16):
        for r in range(2):
            a(f'v_sub_f32 v{8+r}, v{F[r]+q}, v{6+r}')
        for r in range(2):
            a(f'v_mul_f32 v{4+r}, v{8+r}, v{8+r}' if q==0 else f'v_fmac_f32 v{4+r}, v{8+r}, v{8+r}')
    wave_sum2(a,4,5,26,27)
    for r in range(2):
        a(f'v_mov_b32 v{4+r}, {f2h(1/1024)}\nv_mul_f32 v{4+r}, s{26+r}, v{4+r}'); rbf(a,4+r)
        a(f'v_add_f32 v{4+r}, {f2h(1e-5)}, v{4+r}'); rbf(a,4+r)
        a(f'v_sqrt_f32 v{4+r}, v{4+r}'); rbf(a,4+r)
        a(f'v_rcp_f32 v{183+r}, v{4+r}'); rbf(a,6+r)
        a(f'v_mov_b32 v{185+r}, v{6+r}')
    for r in range(2):
        for q in range(8):
            x=F[r]+2*q; d=R[r]+q
            a(f'''v_sub_f32 v{x}, v{x}, v{185+r}
            v_sub_f32 v{x+1}, v{x+1}, v{185+r}
            v_cvt_pk_bf16_f32 v{x+1}, v{x}, v{x+1}
            v_lshlrev_b32 v{x}, 16, v{x+1}
            v_and_b32 v{x+1}, 0xffff0000, v{x+1}
            v_mul_f32 v{x}, v{x}, v{183+r}
            v_mul_f32 v{x+1}, v{x+1}, v{183+r}
            v_cvt_pk_bf16_f32 v{d}, v{x}, v{x+1}''')
        a(f'''ds_write_b128 v180, {V(R[r],4)} offset:{2048*r}
        ds_write_b128 v180, {V(R[r]+4,4)} offset:{2048*r+1024}
        buffer_store_dwordx4 {V(R[r],4)}, v3, s[12:15], s{23+r} offen{sc}
        buffer_store_dwordx4 {V(R[r]+4,4)}, v3, s[12:15], s{23+r} offen offset:1024{sc}''')
    a('s_waitcnt lgkmcnt(0)')
    for r in range(2):
        for t in range(2):
            for e2 in range(2): a(f'ds_read_b64_tr_b16 {V(F[r]+4*t+2*e2,2)}, v181 offset:{2048*r+(16*t+8*e2)*64}')
    a(f's_waitcnt vmcnt({6 if pf==1 else 4})\nbuffer_store_short v194, v191, s[44:47], s31 offen\nbuffer_store_short v195, v191, s[44:47], s31 offen offset:8')
    for c in range(4):
        for z in range(4): a(f'v_perm_b32 v{212+4*c+z}, v{196+4*z+2+(c>>1)}, v{196+4*z+(c>>1)}, s{48+(c&1)}')
        a(f'buffer_store_dwordx4 {V(212+4*c,4)}, v190, s[44:47], s31 offen offset:{16*c}{sc}')
    a('s_waitcnt lgkmcnt(0)')
    YR=[116,148]; YI=[132,164]
    for r in range(2):
        mfma(a,YR[r],F[r],C1,0); mfma(a,YI[r],F[r],S1,0); mfma(a,YR[r],F[r]+4,C1+4); mfma(a,YI[r],F[r]+4,S1+4)
    for r in range(2):
        a(f'v_sub_f32 v{187+r}, v{YR[r]}, v{YR[r]+1}')
        for q in range(2,16): a(f'v_{"add" if q%2==0 else "sub"}_f32 v{187+r}, v{187+r}, v{YR[r]+q}')
        a(f'v_readlane_b32 s{28+r}, v{187+r}, 32')
        for q in range(0,16,2): cmul2(a,YR[r]+q,YI[r]+q,TC+q,TS+q,4)
        a(f'v_add_f32 v{187+r}, s{28+r}, v{187+r}')
        for q in range(8): a(f'v_cvt_pk_bf16_f32 v{F[r]+q}, v{YR[r]+2*q}, v{YR[r]+2*q+1}\nv_cvt_pk_bf16_f32 v{F[r]+8+q}, v{YI[r]+2*q}, v{YI[r]+2*q+1}')
        mfma(a,YR[r],A1,F[r],0); mfma(a,YR[r],A1+4,F[r]+4); mfma(a,YR[r],A2,F[r]+8); mfma(a,YR[r],A2+4,F[r]+12)
    a('v_cmp_eq_u32 vcc, 0, v2')
    for r in range(2):
        a(f'''v_mul_f32 v{187+r}, 0.5, v{187+r}
        v_mul_f32 v189, 0.5, v{YR[r]}
        v_cndmask_b32 v{YR[r]}, v{YR[r]}, v189, vcc
        v_cndmask_b32 v{YR[r]+8}, v{YR[r]+8}, v{187+r}, vcc''')
    for q in range(8):
        a(f'''v_cvt_pk_bf16_f32 v{20+2*q}, v{YR[0]+q}, v{YR[1]+q}
        v_cvt_pk_bf16_f32 v{21+2*q}, v{YR[0]+8+q}, v{YR[1]+8+q}
        ds_write_b64 v182, {V(20+2*q,2)} offset:{(8*(q>>2)+(q&3))*256}''')
    a('''v_lshlrev_b32 v1, 2, v0
    v_lshlrev_b32 v3, 4, v0
    s_lshl_b32 s23, s2, 14
    s_waitcnt lgkmcnt(0)
    s_barrier''')
    for u in range(4):
        a(f'ds_read2st64_b32 {V(36+4*u,2)}, v1 offset0:{4*u} offset1:{16+4*u}\nds_read2st64_b32 {V(38+4*u,2)}, v1 offset0:{32+4*u} offset1:{48+4*u}')
    for u in range(4):
        a(f's_waitcnt lgkmcnt({6-2*u})\nbuffer_store_dwordx4 {V(36+4*u,4)}, v3, s[16:19], s23 offen{sc}\ns_add_u32 s23, s23, 4096')
    stamp(a,o); stamp_out(a,o,0,'k0_dbg')
    if o.get('rowk1'):
        a('s_or_b32 s8, s2, s20\ns_cbranch_scc1 k0_end\ns_load_dwordx2 s[6:7], s[0:1], 72\ns_waitcnt lgkmcnt(0)'); srd(a,8,6,48*MB,256)
        a('s_mov_b64 exec, 1\nbuffer_load_dword v4, off, s[8:11], 0\ns_waitcnt vmcnt(0)\nv_add_u32 v4, 1, v4\nbuffer_store_dword v4, off, s[8:11], 0')
    a('k0_end:\ns_endpgm')
    return a.text(), kernel_desc('k0_kernel',232), '; @launch kernel=k0_kernel grid=(256,1,1) block=(256,1,1) lds=16384'
```

```python
import re
TRANS=('v_exp_f32','v_log_f32','v_rcp_f32','v_rsq_f32','v_sqrt_f32','v_sin_f32','v_cos_f32')
def regs(tok):
    tok=tok.strip().lstrip('-').strip('|')
    m=re.match(r'^([vsa])\[(\d+):(\d+)\]$',tok)
    if m: return {(m.group(1),i) for i in range(int(m.group(2)),int(m.group(3))+1)}
    m=re.match(r'^([vsa])(\d+)$',tok)
    if m: return {(m.group(1),int(m.group(2)))}
    if tok=='vcc': return {('s','vcc')}
    if tok=='m0': return {('s','m0')}
    return set()
def V(b,n=1): return f'v{b}' if n==1 else f'v[{b}:{b+n-1}]'
def S(b,n=1): return f's{b}' if n==1 else f's[{b}:{b+n-1}]'
def A(b,n=1): return f'a{b}' if n==1 else f'a[{b}:{b+n-1}]'
class Asm:
    def __init__(s): s.l=[]; s.h=[]
    def raw(s,t): s.l.append(t)
    def label(s,n): s.l.append(n+':')
    def analyze(s,t):
        op=t.split()[0]; rest=re.sub(r'(neg_lo|neg_hi|op_sel|op_sel_hi|quad_perm):\[[^\]]*\]','',t[len(op):])
        ops=[o.strip().split(' ')[0] for o in rest.split(',')] if rest.strip() else []
        R=[regs(o) for o in ops]; U=lambda x:set().union(*x) if x else set()
        d=dict(op=op,kind='other',dst=set(),src=set(),ab=set(),c=set(),dpp=('quad_perm' in t or 'row_' in t),data=set())
        if op.startswith('v_mfma'):
            d.update(kind='mfma',dst=R[0],ab=R[1]|R[2],c=R[3],src=R[1]|R[2]|R[3]); d['p']=8 if '32x32' in op else 4
        elif op.startswith('v_permlane'):
            d.update(kind='valu',dst=R[0]|R[1],src=R[0]|R[1])
        elif op.startswith('v_'):
            d.update(kind='valu',dst=R[0],src=U(R[1:]))
            if op.startswith(('v_fmac','v_writelane','v_pk_fmac')) or d['dpp']: d['src']|=R[0]
            if '_co_' in op: d['dst']|=R[1]
        elif op.startswith(('buffer_load','global_load')):
            if ' lds' in t: d.update(kind='vmem',src=U(R)|{('s','m0')})
            else: d.update(kind='vmem',dst=R[0],src=U(R[1:]))
        elif op.startswith(('buffer_store','global_store','buffer_atomic','global_atomic')):
            d.update(kind='vmem',src=U(R))
            if 'x4' in op or 'x3' in op: d['data']=R[0] if op.startswith('buffer') else R[1]
        elif op.startswith('ds_read'): d.update(kind='ds',dst=R[0],src=U(R[1:]))
        elif op.startswith('ds_'): d.update(kind='ds',src=U(R))
        elif op.startswith('s_') and R and not op.startswith(('s_cmp','s_waitcnt','s_nop','s_cbranch','s_branch')):
            d.update(kind='salu',dst=R[0],src=U(R[1:]))
        return d
    def need(s,p,c):
        n=0; pk,ck=p['kind'],c['kind']
        vd={r for r in p['dst'] if r[0]!='s'}; sd={r for r in p['dst'] if r[0]=='s'}
        if pk=='valu':
            if ck=='mfma' and vd&c['src']: n=max(n,2)
            if p['op'].startswith(TRANS) and vd&c['src']: n=max(n,1)
            if ck=='valu' and vd&c['src']:
                if c['dpp'] or c['op'].startswith('v_permlane'): n=max(n,2)
                if c['op'].startswith(('v_readlane','v_readfirstlane')): n=max(n,1)
            if sd&c['src']:
                if ck=='valu': n=max(n,4 if c['op'].startswith(('v_readlane','v_writelane')) else 2)
                if ck=='vmem': n=max(n,5)
                if ck=='salu': n=max(n,1)
            if c['op'].startswith('v_cndmask') and ('s','vcc') in sd: n=max(n,2)
        if pk=='mfma':
            big=12 if p['p']==8 else 8
            if ck=='mfma':
                if vd&c['ab']: n=max(n,big)
                if vd&c['c'] and vd!=c['c']: n=max(n,big-2)
                if vd&c['dst'] and vd!=c['c']: n=max(n,big)
            elif ck in('valu','vmem','ds'):
                if vd&(c['src']|c['dst']): n=max(n,big)
                if ck=='valu' and p['c']&c['dst']: n=max(n,7 if p['p']==8 else 3)
        if pk=='salu' and ('s','m0') in sd and ('s','m0') in c['src'] and ck=='vmem': n=max(n,1)
        if pk=='vmem' and p['data']&c['dst']: n=max(n,2)
        return n
    def __call__(s,t):
        for t1 in t.strip().split('\n'):
            t1=t1.split(';')[0].strip()
            if not t1: continue
            if t1.endswith(":") or t1.startswith("."): s.l.append(t1); continue
            c=s.analyze(t1); dist=0; pad=0
            for p in reversed(s.h[-24:]):
                pad=max(pad,s.need(p,c)-dist); dist+=p['w']
            while pad>0:
                k=min(pad,16); s.l.append(f'  s_nop {k-1}'); s.h.append(dict(op='s_nop',kind='other',dst=set(),src=set(),data=set(),w=k)); pad-=k
            c['w']=(int(t1.split()[1])+1) if c['op']=='s_nop' else 1
            s.h.append(c); s.l.append('  '+t1)
    def text(s): return '\n'.join(s.l)+'\n'
def kernel_head(name): return f'.text\n.globl {name}\n.p2align 8\n.type {name},@function\n{name}:\n'
def kernel_desc(name,vgpr,sgpr=96,acc=None):
    acc=acc or (vgpr+3)//4*4
    return f'''.section .rodata,"a"
.p2align 6
.amdhsa_kernel {name}
  .amdhsa_next_free_vgpr {vgpr}
  .amdhsa_next_free_sgpr {sgpr}
  .amdhsa_accum_offset {acc}
  .amdhsa_group_segment_fixed_size 0
  .amdhsa_kernarg_size 80
  .amdhsa_user_sgpr_count 2
  .amdhsa_user_sgpr_kernarg_segment_ptr 1
  .amdhsa_system_sgpr_workgroup_id_x 1
.end_amdhsa_kernel
'''
def srd(a,d,base,off,nbytes):
    if off: a(f's_add_u32 s{d}, s{base}, {hex(off)}\ns_addc_u32 s{d+1}, s{base+1}, 0')
    else: a(f's_mov_b32 s{d}, s{base}\ns_mov_b32 s{d+1}, s{base+1}')
    a(f's_mov_b32 s{d+2}, {hex(nbytes)}\ns_mov_b32 s{d+3}, 0x20000')
MB=1<<20
WS_XN=0; WS_X1=4*MB; WS_H=8*MB; WS_Z=24*MB; WS_S=28*MB
WS_WT=36*MB
H_BYTES=2048*3584*2
import struct
def f2h(x): return hex(struct.unpack('<I',struct.pack('<f',x))[0])
def stamp(a,o,i=None):
    if not o.get('dbg'): return
    if i==0: a.ns=0
    i=a.ns; a.ns+=1
    a(f's_memtime s[54:55]\ns_memrealtime s[56:57]\ns_waitcnt lgkmcnt(0)\ns_mov_b32 s{64+2*i}, s54\ns_mov_b32 s{65+2*i}, s56')
def stamp_out(a,o,n,lab,wgs=(0,203)):
    if not o.get('dbg'): return
    a('s_waitcnt vmcnt(0) lgkmcnt(0)'); stamp(a,o); n=a.ns
    a(f's_load_dwordx2 s[60:61], s[0:1], 72\ns_waitcnt lgkmcnt(0)\ns_add_u32 s60, s60, 0x3c00000\ns_addc_u32 s61, s61, 0\ns_mov_b32 s62, 2048\ns_mov_b32 s63, 0x20000\ns_cmp_lg_u32 s20, 0\ns_cbranch_scc1 {lab}\ns_mov_b32 s59, 4096')
    if o.get('hw'):
        wgs=(int(o['hw']),); a('s_load_dwordx2 s[60:61], s[0:1], 64\ns_waitcnt lgkmcnt(0)\ns_mov_b32 s62, 256')
    for w in wgs: SLOT[0]+=1; a(f's_movk_i32 s58, {SLOT[0]*128}\ns_cmp_eq_u32 s2, {w}\ns_cselect_b32 s59, s58, s59')
    a('v_mov_b32 v1, s59')
    for i in range(1,n):
        for z in range(2): a(f's_sub_u32 s58, s{64+2*i+z}, s{64+z}\nv_mov_b32 v0, s58\nbuffer_store_dword v0, v1, s[60:63], 0 offen offset:{4*(i-1)+64*(z^int("hw" in o))}')
    a(f'v_mov_b32 v0, s65\nbuffer_store_dword v0, v1, s[60:63], 0 offen offset:124\n{lab}:')

SLOT=[-1]
```
